```python
import torch

def _softmax(x, axis=-1):
    return torch.softmax(x, dim=axis)
def _gelu(x):
    return torch.nn.functional.gelu(x, approximate="tanh")
def _silu(x):
    return torch.nn.functional.silu(x)
def _sigmoid(x):
    return torch.sigmoid(x)
def _layernorm(x, axis=-1, eps=1e-5):
    m = x.mean(dim=axis, keepdim=True)
    v = x.var(dim=axis, keepdim=True, unbiased=False)
    return (x - m) / torch.sqrt(v + eps)
def _scatter_add(tgt, idx, src, axis=0):
    return tgt.clone().index_add_(axis, idx, src)
def _segment_sum(src, seg, n):
    out = torch.zeros((n,) + src.shape[1:], dtype=src.dtype)
    return out.index_add_(0, seg, src)
def _pad(x, pw):
    flat = tuple(v for pair in reversed(pw) for v in pair)
    return torch.nn.functional.pad(x, flat)

kernel_name = 'gated_mix__ssm_conv_s4__dense_activation_squared_relu__prompt'

def setup_inputs():

    _w = (lambda a: (lambda t: t.to(torch.bfloat16) if t.is_floating_point() else t)(torch.as_tensor(a)))
    def _A_setup():
        B, L, D, N = 1, 2048, 512, 128
        A_re = -(lambda _x: torch.exp(torch.as_tensor(_x)))((lambda *s: torch.randn(*s, dtype=torch.bfloat16) * 3.2)(D, N))
        A_im = torch.pi * (lambda *s: torch.randn(*s, dtype=torch.bfloat16) * 0.1)(D, N)
        B_re = (lambda *s: torch.randn(*s, dtype=torch.bfloat16) * 0.2)(D, N)
        B_im = (lambda *s: torch.randn(*s, dtype=torch.bfloat16) * 0.2)(D, N)
        C_re = (lambda *s: torch.randn(*s, dtype=torch.bfloat16) * 0.2)(D, N)
        C_im = (lambda *s: torch.randn(*s, dtype=torch.bfloat16) * 0.2)(D, N)
        log_dt = (lambda *s: torch.randn(*s, dtype=torch.bfloat16) * 0.1)(D) * 0.5 - 4.0
        Dskip = (lambda *s: torch.randn(*s, dtype=torch.bfloat16) * 0.1)(D)
        return {
            "u": _w((lambda *s: torch.randn(*s, dtype=torch.bfloat16) * 0.05)(B, L, D)),
            "A_re": _w(A_re),
            "A_im": _w(A_im),
            "B_re": _w(B_re),
            "B_im": _w(B_im),
            "C_re": _w(C_re),
            "C_im": _w(C_im),
            "log_dt": _w(log_dt),
            "Dskip": _w(Dskip),
        }
    _A_in = _A_setup()

    def _B_setup():
        B, S, D, F = 1, 2048, 512, 1376
        return {
            "x": _w((lambda *s: torch.randn(*s, dtype=torch.bfloat16) * 0.05)(B, S, D)),
            "w1": _w((lambda *s: torch.randn(*s, dtype=torch.bfloat16) * 0.05)(D, F)),
            "b1": _w((lambda *s: torch.randn(*s, dtype=torch.bfloat16) * 0.05)(F)),
            "w2": _w((lambda *s: torch.randn(*s, dtype=torch.bfloat16) * 0.05)(F, D)),
            "b2": _w((lambda *s: torch.randn(*s, dtype=torch.bfloat16) * 0.05)(D)),
        }
    _B_in = _B_setup()

    return {
        "A_u": _A_in["u"],
        "A_A_re": _A_in["A_re"],
        "A_A_im": _A_in["A_im"],
        "A_B_re": _A_in["B_re"],
        "A_B_im": _A_in["B_im"],
        "A_C_re": _A_in["C_re"],
        "A_C_im": _A_in["C_im"],
        "A_log_dt": _A_in["log_dt"],
        "A_Dskip": _A_in["Dskip"],
        "B_x": _B_in["x"],
        "B_w1": _B_in["w1"],
        "B_b1": _B_in["b1"],
        "B_w2": _B_in["w2"],
        "B_b2": _B_in["b2"],
        "gate_w": _w((lambda *s: torch.randn(*s, dtype=torch.bfloat16) * 0.05)(512) * 16.0),
    }

def reference(A_u, A_A_re, A_A_im, A_B_re, A_B_im, A_C_re, A_C_im, A_log_dt, A_Dskip, B_x, B_w1, B_b1, B_w2, B_b2, gate_w):
    def _A_ref(u, A_re, A_im, B_re, B_im, C_re, C_im, log_dt, Dskip):
        Bsz, L, D = u.shape
        dt = torch.exp(log_dt)[:, None]
        A = A_re + 1j * A_im
        Bc = B_re + 1j * B_im
        Cc = C_re + 1j * C_im
        logdA = dt * A
        dB = dt * Bc
        l = (lambda x, dt: x.to(dt))(torch.arange(L), A_re.dtype)
        P = torch.exp(logdA[:, :, None] * l[None, None, :])
        K = torch.einsum("dn,dnl,dn->dl", Cc, P, dB).real
        L2 = 2 * L
        Kp = _pad(K, ((0, 0), (0, L)))
        up = (lambda x, *d: x.permute(*d))(u, 0, 2, 1)
        up = _pad(up, ((0, 0), (0, 0), (0, L)))
        Kf = (lambda x, axes=(-2,-1): torch.fft.rfft2(x.float(), dim=axes))(Kp[:, None, :], axes=(-2, -1))
        Uf = (lambda x, axes=(-2,-1): torch.fft.rfft2(x.float(), dim=axes))(up[:, :, None, :], axes=(-2, -1))
        Yf = Uf * Kf[None, :, :, :]
        y = (lambda x, s, axes=(-2,-1): torch.fft.irfft2(x, s=s, dim=axes).to(torch.bfloat16))(Yf, (1, L2), axes=(-2, -1))[:, :, 0, :L]
        y = (lambda x, *d: x.permute(*d))(y, 0, 2, 1) + u * Dskip[None, None, :]
        return y

    def _B_ref(x, w1, b1, w2, b2):
        h = torch.einsum("bsd,df->bsf", x, w1) + b1
        zero = torch.zeros_like(h)
        r = torch.where(h > zero, h, zero)
        h = r * r
        out = torch.einsum("bsf,fd->bsd", h, w2) + b2
        return out

    x = A_u
    g = _sigmoid((x * gate_w).sum(-1, keepdims=True))
    a = _A_ref(x, A_A_re, A_A_im, A_B_re, A_B_im, A_C_re, A_C_im, A_log_dt, A_Dskip)
    b = _B_ref(x, B_w1, B_b1, B_w2, B_b2)
    return g * a + (1 - g) * b
```

```python
KNAME = "gated_mix__ssm_conv_s4__dense_activation_squared_relu__prompt_kernel"
class Asm:
    def __init__(self):
        self.lines = []
    def __call__(self, s=""):
        for l in s.split("\n"):
            self.lines.append(l)
    def text(self):
        return "\n".join(self.lines) + "\n"

def header(launch_lines):
    s = "\n".join(launch_lines) + "\n"
    s += '.amdgcn_target "amdgcn-amd-amdhsa--gfx950"\n.text\n'
    return s
def kbegin(name=KNAME):
    return f".globl {name}\n.p2align 8\n.type {name},@function\n{name}:\n"
def kdesc(name=KNAME, vgpr=256, sgpr=102, accum=256):
    return f""".amdhsa_kernel {name}
  .amdhsa_next_free_vgpr {vgpr}
  .amdhsa_next_free_sgpr {sgpr}
  .amdhsa_accum_offset {accum}
  .amdhsa_group_segment_fixed_size 0
  .amdhsa_kernarg_size 144
  .amdhsa_user_sgpr_count 2
  .amdhsa_user_sgpr_kernarg_segment_ptr 1
  .amdhsa_system_sgpr_workgroup_id_x 1
.end_amdhsa_kernel
"""
RODATA = '.section .rodata,"a"\n.p2align 6\n'
```

```python
import re
TRANS = ("v_exp_f32","v_log_f32","v_rcp_f32","v_rsq_f32","v_sqrt_f32","v_sin_f32","v_cos_f32")
def regs_of(op):
    op = op.strip()
    op = op.lstrip("-").strip("|")
    if op.startswith("abs("): op = op[4:-1]
    m = re.fullmatch(r"([vsa])(\d+)", op)
    if m: return {(m.group(1), int(m.group(2)))}
    m = re.fullmatch(r"([vsa])\[(\d+):(\d+)\]", op)
    if m: return {(m.group(1), i) for i in range(int(m.group(2)), int(m.group(3))+1)}
    if op == "vcc": return {("s","vcc")}
    if op == "m0": return {("s","m0")}
    if op == "exec": return {("s","exec")}
    return set()
class I: pass
def parse(line):
    s = line.split(";")[0].strip()
    if not s or s.endswith(":") or s.startswith("."): return None
    parts = s.split(None, 1)
    mn = parts[0]
    rest = parts[1] if len(parts) > 1 else ""
    ops = []
    for o in re.split(r",\s*(?![^\[]*\])", rest):
        o = o.strip()
        if o: ops.append(o)
    mods = ""
    if ops:
        last = ops[-1].split(None, 1)
        ops[-1] = last[0]
        mods = last[1] if len(last) > 1 else ""
    i = I(); i.mn = mn; i.ops = ops; i.mods = mods; i.line = line
    i.mfma = mn.startswith("v_mfma")
    i.valu = mn.startswith("v_") and not i.mfma
    i.ds = mn.startswith("ds_")
    i.vmem = mn.startswith("buffer_") or mn.startswith("global_")
    i.salu = mn.startswith("s_")
    i.trans = any(mn.startswith(t) for t in TRANS)
    i.dot = mn.startswith("v_dot")
    i.dpp = "quad_perm" in mods or "row_" in mods or "wave_" in mods or mn.endswith("_dpp")
    i.perml = mn.startswith("v_permlane")
    R = [regs_of(o) for o in ops]
    w = set(); r = set()
    i.lds_dma = i.vmem and (" lds" in " "+mods or "_lds_" in mn)
    i.store = False
    if i.mfma:
        w = R[0]; r = R[1] | R[2] | R[3]; i.srcc = R[3]; i.ab = R[1] | R[2]
    elif i.valu:
        if mn.startswith("v_cmp"):
            w = R[0]; r = set().union(*R[1:])
        elif i.perml:
            w = R[0] | R[1]; r = R[0] | R[1]
        else:
            w = R[0]; r = set().union(*R[1:]) if len(R) > 1 else set()
            if mn.startswith(("v_fmac","v_dot2c","v_writelane")) or i.dpp: r |= R[0]
            if mn.startswith(("v_add_co","v_addc_co","v_sub_co")): w |= R[1]
    elif i.ds:
        if mn.startswith("ds_read") : w = R[0]; r = set().union(*R[1:])
        else: r = set().union(*R)
    elif i.vmem:
        if "store" in mn:
            i.store = True; r = set().union(*R)
            i.data = R[0] if mn.startswith("buffer") else R[1]
        elif i.lds_dma: r = set().union(*R) | {("s","m0")}
        elif mn.startswith("buffer_wbl2") or mn.startswith("buffer_inv"): pass
        else: w = R[0]; r = set().union(*R[1:])
    elif i.salu:
        if mn.startswith(("s_cmp","s_cbranch","s_branch","s_waitcnt","s_barrier","s_nop","s_endpgm","s_sleep","s_setprio")):
            r = set().union(*R) if R else set()
        else:
            w = R[0] if R else set(); r = set().union(*R[1:]) if len(R) > 1 else set()
            if "saveexec" in mn: w |= {("s","exec")}
    i.w = w; i.r = r
    i.states = 1
    if mn == "s_nop": i.states = int(ops[0], 0) + 1
    return i
def check(text):
    ins = [p for p in (parse(l) for l in text.split("\n")) if p]
    errs = []
    for k, c in enumerate(ins):
        dist = 0
        for p in reversed(ins[max(0,k-24):k]):
            need = 0; why = ""
            vw = {x for x in p.w if x[0] in "va"}; sw = {x for x in p.w if x[0] == "s"}
            if p.valu and c.mfma and vw & c.r: need, why = (3 if p.dot else 2), "VALU->MFMA"
            if p.mfma:
                n = 12 if "32x32" in p.mn else 8
                if c.mfma:
                    if p.w & c.ab: need, why = n, "MFMA D->A/B"
                    elif p.w & c.srcc and p.w != c.srcc: need, why = n-2, "MFMA D->C overlap"
                    elif p.w & c.w and p.w != c.srcc: need, why = n-2, "MFMA WAW"
                elif (c.valu or c.ds or c.vmem) and p.w & (c.r | c.w): need, why = n, "MFMA D->other"
                if c.valu and (p.srcc & c.w) and need < (7 if "32x32" in p.mn else 3): need, why = (7 if "32x32" in p.mn else 3), "MFMA C WAR"
            if p.valu and (c.dpp or c.perml) and vw & c.r: need, why = max(need,2), "VALU->DPP/perm"
            if p.trans and c.valu and not c.trans and vw & c.r: need, why = max(need,1), "trans->VALU"
            if p.valu and c.valu and sw & c.r: need, why = max(need,2), "VALU sgpr->VALU"
            if p.valu and c.mn.startswith(("v_readfirstlane","v_readlane")) and vw & c.r: need, why = max(need,1), "VALU->readlane"
            if p.valu and c.vmem and sw & c.r: need, why = max(need,5), "VALU sgpr->VMEM"
            if p.salu and ("s","m0") in p.w and c.lds_dma: need, why = max(need,1), "M0->DMA"
            if p.store and ("x4" in p.mn or "x3" in p.mn) and p.data & c.w: need, why = max(need, 2 if c.valu else 1), "store WAR"
            if p.dot and (c.valu or c.ds or c.vmem) and vw & (c.r | c.w):
                same = c.mn == p.mn
                if same:
                    ab = set().union(*[regs_of(o) for o in c.ops[1:3]])
                    if vw & ab: need, why = max(need,3), "dot->dot AB"
                else: need, why = max(need,3), "dot->other"
            if p.valu and ("s","exec") in p.w and c.mfma: need, why = max(need,4), "exec->MFMA"
            if need > dist:
                errs.append(f"{why}: need {need} have {dist}\n    {p.line.strip()}\n    {c.line.strip()}")
            dist += p.states
            if dist >= 20: break
    return errs
```

```python
import sys, struct
from asmlib import *
import hz

OPT = dict(map="b", rot=1, diag=0, out="k.s")
for x in sys.argv[1:]:
    k, v = x.split("="); OPT[k] = int(v) if v.lstrip("-").isdigit() else v
DIAG = OPT["diag"]

WS_UT = 0x100000
WS_H  = 0x600000
WS_A  = 0xC00000
WS_END = 0x1000000
WS_STAMP = 0x8000000
XR = 0
W1R = 65536
CA = 114688
KA = CA
UA = CA + 17408
MISC = CA + 44544
GW = MISC
TBL = MISC + 1024
GV = MISC + 4096
FLG = MISC + 4352
STG = CA
UTS = CA + 34816
IMG = KA
LDS_SIZE = 163840
SPIN = 20000

class Cnt:
    def __init__(s, a, name, mx): s.a = a; s.name = name; s.mx = mx; s.q = []
    def issue(s, tag): s.q.append(tag)
    def need(s, tags):
        if isinstance(tags, str): tags = [tags]
        idx = -1
        for i, t in enumerate(s.q):
            if t in tags: idx = i
        if idx < 0: return None
        n = len(s.q) - 1 - idx
        s.q = s.q[idx+1:]
        return min(n, s.mx)
    def wait(s, tags):
        n = s.need(tags)
        if n is not None: s.a(f"    s_waitcnt {s.name}({n})")
    def all(s):
        s.q = []; s.a(f"    s_waitcnt {s.name}(0)")

a = Asm()
hdr = open("gated_mix__ssm_conv_s4__dense_activation_squared_relu__prompt.s.ref").read().split("; Override launch")[0]
a(hdr.rstrip())
a(header([f"; @launch grid=(256,1,1) block=(512,1,1) lds={LDS_SIZE}"]))
a(kbegin())

def vr(b, n): return f"v[{b}:{b+n-1}]"
nstamp = [0]
def stamp(k):
    if DIAG: a(f"    s_memtime s[{80+2*k}:{81+2*k}]")

sU, sAre, sAim, sBre, sBim, sCre, sCim, sLdt = [f"s[{8+2*i}:{9+2*i}]" for i in range(8)]
sDsk, sBx, sW1, sB1, sW2, sB2, sGw, sOut = [f"s[{24+2*i}:{25+2*i}]" for i in range(8)]
sDbg, sWs = "s[40:41]", "s[42:43]"
rX, rW1, rW2, rWS, rB1 = "s[44:47]", "s[48:51]", "s[52:55]", "s[56:59]", "s[60:63]"
sWave, sI, sJ, sMt, sDt, sRot = "s64", "s65", "s66", "s67", "s68", "s69"
sT0, sT1 = "s70", "s71"

def srd(base, lo, hi, size):
    a(f"""    s_mov_b32 s{base}, s{lo}
    s_mov_b32 s{base+1}, s{hi}
    s_mov_b32 s{base+2}, {size}
    s_mov_b32 s{base+3}, 0x20000""")

def epoch_load1(): a(f"    s_load_dwordx2 s[72:73], {sWs}, 0 glc")
def epoch_load2(): a(f"    s_waitcnt lgkmcnt(0)\n    s_load_dwordx2 s[74:75], {sDbg}, 0 glc")
def epoch_tag():
    a(f"""    s_waitcnt lgkmcnt(0)
    s_mul_i32 s76, s72, 0x9E3779B1
    s_mul_i32 s77, s73, 0x85EBCA77
    s_add_u32 s76, s76, s77
    s_add_u32 s76, s76, 0x27D4EB2F
    s_lshr_b32 s77, s76, 15
    s_xor_b32 s76, s76, s77
    s_mul_i32 s76, s76, 0xC2B2AE3D
    s_lshr_b32 s77, s76, 13
    s_xor_b32 s76, s76, s77
    s_mul_i32 s77, s76, 0x165667B1
    s_add_u32 s77, s77, s73
    s_lshr_b32 s78, s77, 16
    s_xor_b32 s77, s77, s78
    s_mul_i32 s77, s77, 0x9E3779B1
    s_or_b32 s76, s76, 0x01010101
    s_or_b32 s77, s77, 0x01010101
    s_xor_b32 {sT0}, s72, s76
    s_xor_b32 {sT1}, s73, s77
    s_cmp_lg_u64 s[74:75], 0
    s_cselect_b32 {sT0}, s74, {sT0}
    s_cselect_b32 {sT1}, s75, {sT1}""")

if DIAG: a("    s_memrealtime s[100:101]\n    s_memtime s[80:81]")
a(f"""    s_cmp_ge_u32 s2, 256
    s_cbranch_scc1 L_end
    s_load_dwordx16 s[8:23], s[0:1], 0
    s_load_dwordx16 s[24:39], s[0:1], 64
    s_load_dwordx4 s[40:43], s[0:1], 128
    s_getpc_b64 s[4:5]
L_pc:
    s_lshr_b32 s3, s2, 3
    s_and_b32 s6, s3, 3
    s_lshl_b32 s6, s6, 6
    v_lshrrev_b32 v1, 3, v0
    v_add_u32 v1, s6, v1
    v_lshlrev_b32 v1, 7, v1
    v_min_u32 v1, L_text_end-L_pc-4, v1
    global_load_dword v255, v1, s[4:5]
    v_lshrrev_b32 v1, 6, v0
    v_and_b32 v0, 63, v0
    s_and_b32 s6, s2, 7
    v_readfirstlane_b32 {sWave}, v1""")
if OPT["map"] == "b":
    a(f"""    s_lshl_b32 {sI}, s6, 1
    s_lshr_b32 s7, s3, 4
    s_add_u32 {sI}, {sI}, s7
    s_and_b32 {sJ}, s3, 15
    s_lshl_b32 s7, s7, 2
    s_add_u32 {sRot}, {sJ}, s7""")
else:
    a(f"""    s_lshr_b32 {sI}, s6, 1
    s_lshl_b32 {sI}, {sI}, 2
    s_lshr_b32 s7, s3, 3
    s_add_u32 {sI}, {sI}, s7
    s_and_b32 {sJ}, s6, 1
    s_lshl_b32 {sJ}, {sJ}, 3
    s_and_b32 s6, s3, 7
    s_add_u32 {sJ}, {sJ}, s6
    s_lshl_b32 s7, s7, 1
    s_add_u32 {sRot}, {sJ}, s7""")
if not OPT["rot"]: a(f"    s_mov_b32 {sRot}, 0")
a(f"""    s_and_b32 s7, {sJ}, 1
    s_lshl_b32 {sMt}, {sI}, 1
    s_add_u32 {sMt}, {sMt}, s7
    s_lshr_b32 {sDt}, {sJ}, 1
    s_cmp_ge_u32 {sWave}, 4
    s_cbranch_scc1 L_C""")

cold = []

vm = Cnt(a, "vmcnt", 63); lg = Cnt(a, "lgkmcnt", 15)
vm.issue("pf")
ACC2, PARK, JIT, HR = 16, 80, 144, 160
ACC1, FR1 = 160, 208
vXG = [240, 241, 242, 243]; vW1G = [244, 245, 246]; vXA = [247, 248, 249, 250]; vW1A = 251
vLIN, vW2G, vW2A, vM, vPR = 1, 2, [3, 4, 5, 6], [8, 9, 10, 11], 7
T0, T1, T2, T3 = 12, 13, 14, 15
a("; ================= F path")
a(f"""    v_lshrrev_b32 v{T0}, 3, v0
    v_and_b32 v{T1}, 7, v0                ; 16B chunk
    v_lshrrev_b32 v{T2}, 4, v0
    v_xor_b32 v{T2}, v{T1}, v{T2}         ; c ^ (l>>4)
    v_lshlrev_b32 v{T2}, 4, v{T2}
    v_lshl_add_u32 v{vXG[0]}, v{T0}, 10, v{T2}
    v_xor_b32 v{T2}, 64, v{vXG[0]}
    v_add_u32 v{vXG[1]}, 7168, v{T2}
    v_add_u32 v{vXG[2]}, 14336, v{vXG[0]}
    v_add_u32 v{vXG[3]}, 21504, v{T2}
    v_and_b32 v{T2}, 2, v{T0}
    v_lshlrev_b32 v{T2}, 1, v{T2}
    v_xor_b32 v{T2}, v{T1}, v{T2}
    v_lshlrev_b32 v{T2}, 4, v{T2}
    v_lshl_add_u32 v{vW2G}, v{T0}, 10, v{T2}
    v_lshlrev_b32 v{vLIN}, 4, v0
    s_mul_i32 s76, {sJ}, 3
    s_sub_u32 s77, 43, s76
    s_lshl_b32 s77, s77, 2""")
for n in range(3):
    a(f"""    v_add_u32 v{T0}, {n*64}, v0
    v_mul_u32_u24 v{T1}, 43691, v{T0}
    v_lshrrev_b32 v{T1}, 19, v{T1}
    v_mul_u32_u24 v{T2}, 12, v{T1}
    v_sub_u32 v{T2}, v{T0}, v{T2}
    v_cmp_gt_i32 vcc, s77, v{T2}
    v_mul_u32_u24 v{T1}, 2752, v{T1}
    v_lshl_add_u32 v{T1}, v{T2}, 4, v{T1}
    v_subrev_u32 v{T1}, {1024*n}, v{T1}
    v_mov_b32 v{T3}, 0x80000000
    v_cndmask_b32 v{vW1G[n]}, v{T3}, v{T1}, vcc""")
a(f"""    s_lshl_b32 s78, {sWave}, 12
    v_and_b32 v{T0}, 31, v0               ; row
    v_lshrrev_b32 v{T1}, 5, v0            ; half
    v_bfe_u32 v{T2}, v0, 1, 3
    v_xor_b32 v{T2}, v{T1}, v{T2}
    v_lshlrev_b32 v{T2}, 4, v{T2}
    v_lshl_add_u32 v{T2}, v{T0}, 7, v{T2}
    v_add_u32 v{vXA[0]}, s78, v{T2}
    v_xor_b32 v{vXA[1]}, 32, v{vXA[0]}
    v_xor_b32 v{vXA[2]}, 64, v{vXA[0]}
    v_xor_b32 v{vXA[3]}, 0x60, v{vXA[0]}
    v_lshlrev_b32 v{vPR}, 1, v{T0}
    v_bfe_u32 v{T0}, v0, 2, 2             ; r
    v_bfe_u32 v{T2}, v0, 4, 1             ; colhalf
    v_and_b32 v{T3}, 3, v0                ; c
    v_lshlrev_b32 v{T3}, 3, v{T3}
    v_lshl_add_u32 v{T3}, v{T2}, 5, v{T3} ; colhalf*32 + c*8
    v_lshl_add_u32 v{T2}, v{T1}, 3, v{T0} ; 8*half + r
    v_mul_u32_u24 v{T2}, 192, v{T2}
    v_add_u32 v{T2}, v{T2}, v{T3}
    v_add_u32 v{vW1A}, {W1R}, v{T2}
    v_lshl_add_u32 v{T2}, v{T1}, 2, v{T0} ; 4*half + r
    v_lshl_add_u32 v{T2}, v{T2}, 7, v{T3}
    v_and_b32 v{T0}, 2, v{T0}
    v_lshlrev_b32 v{T0}, 5, v{T0}
    v_xor_b32 v{T2}, v{T2}, v{T0}
    v_add_u32 v{vW2A[0]}, s78, v{T2}
    v_xor_b32 v{vW2A[1]}, 64, v{vW2A[0]}
    s_mul_i32 s79, {sWave}, 3072
    s_add_u32 s79, s79, {W1R}
    v_add_u32 v{vW2A[2]}, s79, v{T2}
    v_xor_b32 v{vW2A[3]}, 64, v{vW2A[2]}""")
BQ = FR1 + 16
for r in range(16):
    if r % 4: a(f"    v_mov_b32 v{BQ+r}, 0")
a(f"""    v_cmp_gt_u32 vcc, 32, v0
    v_mov_b32 v{T0}, 0x3f80
    s_waitcnt lgkmcnt(0)
    v_cndmask_b32 v{BQ+12}, 0, v{T0}, vcc""")
stamp(1)
epoch_load1()
srd(44, 8, 9, 2097152); srd(48, 28, 29, 1409024)
a(f"""    s_lshl_b32 s6, {sI}, 17
    s_lshl_b32 s7, {sWave}, 15
    s_add_u32 s6, s6, s7
    s_mul_i32 s7, {sWave}, {16*2752}
    s_mul_i32 s76, {sJ}, 192
    s_add_u32 s7, s7, s76""")
sXL, sWL = "s96", "s97"
a(f"    s_mov_b32 {sXL}, s78\n    s_mov_b32 {sWL}, s79")

def dma_chunk(c):
    slot = c % 4
    L = []
    pre = f"""    s_add_u32 s76, {sRot}, {c}
    s_and_b32 s76, s76, 7
    s_lshl_b32 s77, s76, 7
    s_add_u32 s77, s77, s6
    s_add_u32 m0, {sXL}, {slot*16384}
    s_mul_i32 s76, s76, {64*2752}
"""
    for q in range(4):
        L.append(((pre if q == 0 else "") + f"    buffer_load_dwordx4 v{vXG[q]}, {rX}, s77 offen offset:{1024*q} lds", f"c{c}"))
    pre = f"""    s_add_u32 m0, {sWL}, {slot*12288}
    s_add_u32 s76, s76, s7
"""
    for q in range(3):
        L.append(((pre if q == 0 else "") + f"    buffer_load_dwordx4 v{vW1G[q]}, {rW1}, s76 offen offset:{1024*q} lds", f"c{c}"))
    return L
def w2pos(p):
    slot, k = divmod(p, 7)
    if k < 3: return 1, slot*12288 + k*1024
    return 0, slot*16384 + (k-3)*1024
sW2B = "s98"
def dma_w2(u):
    reg, off = w2pos(u % 28)
    return (f"""    s_add_u32 m0, {sWL if reg else sXL}, {off}
    s_add_u32 s76, {sW2B}, {8192*u}
    buffer_load_dwordx4 v{vW2G}, {rW2}, s76 offen lds""", f"u{u}")
def emit_dma(item):
    a(item[0]); vm.issue(item[1])

for it in dma_chunk(0): emit_dma(it)
srd(60, 30, 31, 2752)
a(f"    s_mul_i32 s76, {sJ}, 192")
for t in range(3):
    a(f"    buffer_load_ushort v{BQ+4*t}, v{vPR}, {rB1}, s76 offen offset:{64*t}"); vm.issue("bias")
for it in dma_chunk(1): emit_dma(it)
epoch_load2()
for it in dma_chunk(2): emit_dma(it)
srd(52, 32, 33, 1409024); srd(56, 42, 43, WS_END if not DIAG else 0x10000000)
a(f"""    s_mul_i32 {sW2B}, {sWave}, {352*1024}
    s_lshl_b32 s76, {sDt}, 7
    s_add_u32 {sW2B}, {sW2B}, s76""")
for it in dma_chunk(3): emit_dma(it)
epoch_tag()
a(f"""    v_and_b32 v{T0}, 7, v0
    v_lshlrev_b32 v{T0}, 3, v{T0}
    v_lshrrev_b64 v[{T2}:{T3}], v{T0}, s[70:71]""")
for i in range(4):
    a(f"""    v_bfe_u32 v{T0}, v{T2}, {2*i}, 1
    v_bfe_u32 v{T1}, v{T2}, {2*i+1}, 1
    v_lshlrev_b32 v{T0}, 15, v{T0}
    v_lshl_or_b32 v{vM[i]}, v{T1}, 31, v{T0}""")
vm.wait("bias")
for t in range(3):
    a(f"    v_mfma_f32_32x32x16_bf16 {vr(ACC1+16*t,16)}, {vr(BQ+4*t,4)}, {vr(BQ+12,4)}, 0")

def g1_reads(c, s, buf):
    slot = c % 4; b = FR1 + 16*buf
    L = [(f"    ds_read_b128 {vr(b+12,4)}, v{vXA[s]} offset:{slot*16384}", f"x{c}_{s}")]
    for t in range(3):
        o = slot*12288 + s*3072 + t*64
        L.append((f"    ds_read_b64_tr_b16 {vr(b+4*t,2)}, v{vW1A} offset:{o}", f"w{c}_{s}_{t}"))
        L.append((f"    ds_read_b64_tr_b16 {vr(b+4*t+2,2)}, v{vW1A} offset:{o+768}", f"w{c}_{s}_{t}"))
    return L
def emit_ds(item):
    a(item[0]); lg.issue(item[1])

vm.wait("c0")
stamp(2)
a("    s_barrier")
for it in g1_reads(0, 0, 0): emit_ds(it)
pend = []
for c in range(8):
    for s in range(4):
        buf = (c*4+s) % 2; b = FR1 + 16*buf
        last = (s == 3)
        nxt = g1_reads(c, s+1, buf^1) if not last else (g1_reads(c+1, 0, buf^1) if c < 7 else [])
        def mf(t):
            lg.wait([f"x{c}_{s}", f"w{c}_{s}_{t}"])
            a(f"    v_mfma_f32_32x32x16_bf16 {vr(ACC1+16*t,16)}, {vr(b+4*t,4)}, {vr(b+12,4)}, {vr(ACC1+16*t,16)}")
        if last:
            for it in pend: emit_dma(it)
            pend = []
            lg.all()
            mf(0)
            if c < 7: vm.wait(f"c{c+1}")
            a("    s_barrier")
            if c + 4 < 8: pend = dma_chunk(c+4)
            else: pend = [dma_w2(u) for u in range(7*(c-4), 7*(c-4)+7)]
            for it in nxt[:5]: emit_ds(it)
            mf(1)
            for it in nxt[5:]: emit_ds(it)
            if c < 7:
                emit_dma(pend.pop(0))
            mf(2)
            if c < 7:
                emit_dma(pend.pop(0))
        else:
            mf(0)
            for it in nxt[:3]: emit_ds(it)
            mf(1)
            for it in nxt[3:]: emit_ds(it)
            mf(2)
            for k in range(2):
                if pend: emit_dma(pend.pop(0))
stamp(3)
sHB = "s99"
a(f"""    s_lshr_b32 s76, {sWave}, 1
    s_lshl_b32 s77, {sI}, 1
    s_add_u32 s76, s76, s77
    s_mul_i32 s76, s76, {86*2048}
    s_and_b32 s77, {sWave}, 1
    s_lshl_b32 s77, s77, 10
    s_add_u32 s76, s76, s77
    s_mul_i32 s77, {sJ}, {3*4096}
    s_add_u32 s76, s76, s77
    s_add_u32 {sHB}, s76, {WS_H}
    s_mul_i32 s78, {sJ}, 3""")
for k in range(2): emit_dma(pend.pop(0))
for t in range(3):
    b = ACC1 + 16*t; p = FR1 + 8*t
    a(f"    s_cmp_ge_u32 s78, {43-t}\n    s_cselect_b32 s77, 0x80000000, 0\n    v_or_b32 v{T0}, s77, v{vLIN}")
    for r in range(16): a(f"    v_mul_f32 v{b+r}, v{b+r}, |v{b+r}|")
    for k in range(8): a(f"    v_cvt_pk_bf16_f32 v{p+k}, v{b+2*k}, v{b+2*k+1}")
    for k in range(8): a(f"    v_pk_max_i16 v{p+k}, v{p+k}, 0")
    for k in range(8): a(f"    v_xor_b32 v{p+k}, v{vM[k%4]}, v{p+k}")
    a(f"    buffer_store_dwordx4 {vr(p,4)}, v{T0}, {rWS}, {sHB} offen sc1"); vm.issue("hs")
    a(f"    buffer_store_dwordx4 {vr(p+4,4)}, v{T0}, {rWS}, {sHB} offen offset:2048 sc1"); vm.issue("hs")
    a(f"    s_add_u32 {sHB}, {sHB}, 4096")
stamp(4)
vm.wait("u15")
for it in pend: emit_dma(it)
pend = []
def w2_reads(step, dst):
    L = []
    for dh in range(2):
        for hf in range(2):
            reg, off = w2pos((2*step+hf) % 28)
            L.append((f"    ds_read_b64_tr_b16 {vr(dst+4*dh+2*hf,2)}, v{vW2A[2*reg+dh]} offset:{off}", f"W{step}"))
    return L
for st in range(8):
    if st >= 3: lg.wait(f"W{st-3}")
    for it in w2_reads(st, PARK+8*st): emit_ds(it)
a(f"""    s_cmp_eq_u32 {sWave}, 3
    s_cselect_b32 s76, 9, 10
    v_lshrrev_b32 v{T0}, 1, v0
    v_min_u32 v{T0}, s76, v{T0}
    v_lshlrev_b32 v{T0}, 12, v{T0}
    v_and_b32 v{T1}, 1, v0
    v_lshl_add_u32 v{T0}, v{T1}, 10, v{T0}
    v_and_b32 v{T1}, 7, v0
    v_lshl_add_u32 v{vPR}, v{T1}, 4, v{T0}
    s_mul_i32 {sHB}, {sMt}, {86*2048}
    s_mul_i32 s77, {sWave}, {22*2048}
    s_add_u32 {sHB}, {sHB}, s77
    s_add_u32 {sHB}, {sHB}, {WS_H}""")
lg.all()
for u in range(28, 36): emit_dma(dma_w2(u))
a(f"    buffer_load_dwordx4 {vr(JIT,4)}, v{vPR}, {rWS}, {sHB} offen offset:2048 sc1"); vm.issue("probe")
for u in range(36, 44): emit_dma(dma_w2(u))
vm.wait("probe")
def chk(base, n, tmp):
    L = [f"    v_xor_b32 v{base+k}, v{vM[k%4]}, v{base+k}" for k in range(n)]
    L.append(f"    v_or3_b32 v{tmp}, v{base}, v{base+1}, v{base+2}")
    k = 3
    while k + 1 < n:
        L.append(f"    v_or3_b32 v{tmp}, v{tmp}, v{base+k}, v{base+k+1}"); k += 2
    if k < n: L.append(f"    v_or_b32 v{tmp}, v{tmp}, v{base+k}")
    L.append(f"    v_and_b32 v{tmp}, 0x80008000, v{tmp}")
    L.append(f"    v_cmp_ne_u32 vcc, 0, v{tmp}")
    return L
for l in chk(JIT, 4, T0): a(l)
a("    s_cbranch_vccnz L_probe_slow\nL_probe_ok:")
cold.append(f"""L_probe_slow:
    s_mov_b32 s77, 0
L_probe_loop:
    s_sleep 2
    buffer_load_dwordx4 {vr(JIT,4)}, v{vPR}, {rWS}, {sHB} offen offset:2048 sc1
    s_add_u32 s77, s77, 1
    s_waitcnt vmcnt(0)
""" + "\n".join(chk(JIT, 4, T0)) + f"""
    s_cmp_ge_u32 s77, {SPIN}
    s_cbranch_scc1 L_probe_ok
    s_cbranch_vccnz L_probe_loop
    s_branch L_probe_ok""")
stamp(5)
NG = 11
def hreg(g): return HR + 16*(g % 6)
def h_loads(g):
    L = []
    for k in range(4):
        pre = f"    s_add_u32 s76, {sHB}, {4096*g}\n" if k == 0 else ""
        L.append((pre + f"    buffer_load_dwordx4 {vr(hreg(g)+4*k,4)}, v{vLIN}, {rWS}, s76 offen offset:{1024*k} sc1", f"h{g}"))
    return L
def h_check(g):
    L = chk(hreg(g), 16, T0)
    L.append(f"    s_cbranch_vccnz L_h{g}_slow\nL_h{g}_ok:")
    cold.append(f"""L_h{g}_slow:
    s_mov_b32 s77, 0
L_h{g}_loop:
""" + "\n".join(x[0] for x in h_loads(g)) + f"""
    s_add_u32 s77, s77, 1
    s_waitcnt vmcnt(0)
""" + "\n".join(chk(hreg(g), 16, T0)) + f"""
    s_cmp_ge_u32 s77, {SPIN}
    s_cbranch_scc1 L_h{g}_ok
    s_cbranch_vccnz L_h{g}_loop
    s_branch L_h{g}_ok""")
    return L
for g in range(6):
    for it in h_loads(g): emit_dma(it)
vm.wait("h0")
for l in h_check(0): a(l)
a("    s_nop 1")
vB2 = PARK
for g in range(NG):
    if g == NG - 1:
        a(f"    s_cmp_eq_u32 {sWave}, 3\n    s_cbranch_scc1 L_g2done")
    fill = []
    if g + 1 < NG:
        fill = [("W", f"h{g+1}")] + [("I", l) for l in h_check(g+1)]
        if g + 1 == NG - 1:
            fill = [("W", f"h{g+1}")] + [("I", l) for l in fill_no_branch] if False else fill
    mf = []
    for st2 in range(2):
        st = 2*g + st2
        wb = PARK + 8*st if st < 8 else JIT + 8*(st % 2)
        for mh in range(2):
            for dh in range(2):
                d = ACC2 + 16*(2*dh+mh)
                cin = "0" if st == 0 else vr(d,16)
                mf.append((st, f"    v_mfma_f32_32x32x16_bf16 {vr(d,16)}, {vr(wb+4*dh,4)}, {vr(hreg(g)+8*st2+4*mh,4)}, {cin}"))
    per = (len(fill) + 6) // 7
    for k, (st, m) in enumerate(mf):
        if k % 4 == 0 and st >= 8: lg.wait(f"W{st}")
        a(m)
        if k % 4 == 0 and 8 <= st + 1 < 22:
            vm.wait([f"u{2*(st+1)}", f"u{2*(st+1)+1}"])
            for it in w2_reads(st+1, JIT + 8*((st+1) % 2)): emit_ds(it)
        if k >= 1:
            for kind, x in fill[(k-1)*per:k*per]:
                if kind == "W": vm.wait(x)
                else:
                    if g + 1 == NG - 1 and "s_cbranch_vccnz" in x:
                        a(f"    s_cmp_eq_u32 {sWave}, 3\n    s_cbranch_scc1 L_h{g+1}_ok")
                    a(x)
    if g + 6 < NG:
        for it in h_loads(g+6): emit_dma(it)
    if g == 5:
        a(f"""    v_and_b32 v{T1}, 7, v0
    v_lshlrev_b32 v{T1}, 4, v{T1}
    s_lshl_b32 s76, {sDt}, 7
    v_add_u32 v{T1}, s76, v{T1}
    global_load_dwordx4 {vr(vB2,4)}, v{T1}, {sB2}"""); vm.issue("b2")
    a("    s_nop 1")
a("L_g2done:")
stamp(6)
a(f"""    v_and_b32 v{T0}, 31, v0
    v_and_b32 v{T1}, 7, v0
    v_lshlrev_b32 v{T1}, 4, v{T1}
    v_lshl_add_u32 v{T0}, v{T0}, 7, v{T1}
    v_lshrrev_b32 v{T1}, 5, v0
    v_lshl_add_u32 v{T0}, v{T1}, 3, v{T0}
    v_add_u32 v{T0}, {sXL}, v{T0}
    s_nop 4""")
PK = HR
for dh in range(2):
    for q in range(4):
        c = 4*dh + q
        a(f"    v_xor_b32 v{PK+40+c}, {16*c}, v{T0}")
for mh in range(2):
    for dh in range(2):
        d = ACC2 + 16*(2*dh+mh); p = PK + 8*(2*mh+dh)
        for k in range(8): a(f"    v_cvt_pk_bf16_f32 v{p+k}, v{d+2*k}, v{d+2*k+1}")
        for q in range(4):
            a(f"    ds_write_b64 v{PK+40+4*dh+q}, {vr(p+2*q,2)} offset:{(2+mh)*16384}")
a(f"""    v_mov_b32 v16, v{vB2}""") if False else None
a("    s_waitcnt vmcnt(0) lgkmcnt(0)")
a("    s_branch L_final")

a("; ================= C path\nL_C:")
vm = Cnt(a, "vmcnt", 63); lg = Cnt(a, "lgkmcnt", 15)
vm.issue("pf")
sCw, sCh, sNh, sD = "s96", "s97", "s98", "s99"
vTid = 1; vIdx = 4
P = 16
a(f"""    s_sub_u32 {sCw}, {sWave}, 4
    s_lshr_b32 {sCh}, {sCw}, 1
    s_and_b32 {sNh}, {sCw}, 1
    s_lshl_b32 {sD}, s2, 1
    s_add_u32 {sD}, {sD}, {sCh}
    s_lshl_b32 s76, {sCw}, 6
    v_add_u32 v{vTid}, s76, v0
    s_lshl_b32 s76, {sD}, 8
    s_lshl_b32 s77, {sNh}, 7
    s_add_u32 s76, s76, s77
    v_lshl_add_u32 v2, v0, 1, s76
    v_lshlrev_b32 v3, 4, v{vTid}
    v_add_u32 v3, L_idx-L_pc, v3
    global_load_dwordx4 {vr(vIdx,4)}, v3, s[4:5]"""); vm.issue("idx")
a(f"""    v_lshrrev_b32 v22, 3, v0
    v_and_b32 v23, 7, v0
    v_lshlrev_b32 v23, 4, v23
    v_lshl_add_u32 v24, v22, 10, v23
    v_add_u32 v25, 7168, v24
    v_lshl_add_u32 v26, v22, 15, v23
    v_lshlrev_b32 v27, 2, v0
    v_mov_b32 v28, 0
    v_add_u32 v29, {FLG}, v27
    ds_write_b32 v29, v28
    s_lshl_b32 s78, s2, 2
    s_waitcnt lgkmcnt(0)""")
stamp(1)
epoch_load1()
a(f"""    s_load_dword s6, {sLdt}, s78
    s_load_dword s7, {sDsk}, s78""")
srd(44, 8, 9, 2097152)
a(f"""    s_lshl_b32 s76, {sMt}, 16
    s_lshl_b32 s77, {sCw}, 14
    s_add_u32 s76, s76, s77
    s_lshl_b32 s77, {sDt}, 7
    s_add_u32 s76, s76, s77
    s_lshl_b32 s77, {sCw}, 11
    s_add_u32 m0, s77, {UTS}
    s_nop 0
    buffer_load_dwordx4 v24, {rX}, s76 offen lds
    buffer_load_dwordx4 v25, {rX}, s76 offen offset:1024 lds"""); vm.issue("ut"); vm.issue("ut")
for k, p in enumerate((sAre, sAim, sBre, sBim, sCre, sCim)):
    a(f"    global_load_ushort v{P+k}, v2, {p}"); vm.issue("par")
a(f"""    s_lshl_b32 s77, {sCw}, 8
    s_add_u32 m0, s77, {GW}
    v_add_u32 v27, s77, v27
    global_load_lds_dword v27, {sGw}"""); vm.issue("gw")
srd(56, 42, 43, WS_END if not DIAG else 0x10000000)
epoch_load2()
vGX, vGW, vG0, vG1 = 30, 31, 32, 33
vSW, vSR = 34, 35
a(f"""    ; tr read address for ut: src lane (g, r, c): row = 4*tau + r, tau = 2*(c&1)+R ; chblock = 8P + 2g + (c>>1)
    v_and_b32 v36, 1, v0
    v_lshlrev_b32 v36, 10, v36             ; 2*(c&1)*4 rows*128
    v_bfe_u32 v37, v0, 2, 2
    v_lshl_add_u32 v36, v37, 7, v36
    v_lshrrev_b32 v37, 4, v0
    v_lshl_add_u32 v36, v37, 4, v36
    v_bfe_u32 v37, v0, 1, 1
    v_lshl_add_u32 v36, v37, 3, v36
    s_lshl_b32 s77, {sCw}, 11
    s_add_u32 s77, s77, {UTS}
    v_add_u32 v36, s77, v36
    s_and_b32 s76, {sJ}, 1
    s_lshl_b32 s76, s76, 13
    v_lshlrev_b32 v{vGX}, 4, v{vTid}
    v_add_u32 v{vGX}, s76, v{vGX}
    v_bfe_u32 v37, v{vTid}, 4, 3
    v_and_b32 v38, 7, v0
    v_xor_b32 v37, v37, v38
    v_lshlrev_b32 v37, 4, v37
    v_add_u32 v{vGW}, {GW}, v37
    v_mov_b32 v{vG0}, 0
    v_mov_b32 v{vG1}, 0
    s_mul_i32 s76, {sCw}, 8704
    s_add_u32 s76, s76, {STG}
    v_lshl_add_u32 v{vSW}, v0, 2, s76
    v_and_b32 v37, 31, v0
    v_mul_u32_u24 v37, 272, v37
    v_lshrrev_b32 v38, 5, v0
    v_lshl_add_u32 v37, v38, 4, v37
    v_add_u32 v{vSR}, s76, v37""")
epoch_tag()

def c_publish_ut():
    vm.wait("ut")
    for Pp in range(2):
        for R in range(2):
            a(f"    ds_read_b64_tr_b16 {vr(40+4*Pp+2*R,2)}, v36 offset:{64*Pp+512*R}"); lg.issue("utr")
    a(f"""    v_and_b32 v37, 2, v0
    v_cmp_eq_u32 vcc, 0, v37
    s_lshl_b32 s76, {sDt}, 19
    s_lshl_b32 s77, {sMt}, 9
    s_add_u32 s76, s76, s77
    s_lshl_b32 s77, {sCw}, 7
    s_add_u32 s76, s76, s77
    s_add_u32 s76, s76, {WS_UT}""")
    for k in range(4):
        a(f"    v_mov_b32 v{48+4*k+1}, {sT0}\n    v_mov_b32 v{48+4*k+3}, {sT1}")
    lg.all()
    for Pp in range(2):
        r1, r2 = 40+4*Pp, 40+4*Pp+2
        for w in range(2):
            a(f"    v_cndmask_b32_dpp v{48+8*Pp+2*w}, v{r2+w}, v{r1+w}, vcc quad_perm:[0,1,0,1] row_mask:0xf bank_mask:0xf")
    a("    s_not_b64 vcc, vcc\n    s_nop 0")
    for Pp in range(2):
        r1, r2 = 40+4*Pp, 40+4*Pp+2
        for w in range(2):
            a(f"    v_cndmask_b32_dpp v{52+8*Pp+2*w}, v{r1+w}, v{r2+w}, vcc quad_perm:[2,3,2,3] row_mask:0xf bank_mask:0xf")
    for Pp in range(2):
        for AB in range(2):
            a(f"    s_add_u32 s77, s76, {Pp*262144 + AB*16384}")
            a(f"    buffer_store_dwordx4 {vr(48+8*Pp+4*AB,4)}, v26, {rWS}, s77 offen sc1"); vm.issue("uts")
    a(f"""    s_or_b32 s76, s2, {sCw}
    s_cmp_lg_u32 s76, 0
    s_cbranch_scc1 L_noann
    v_mov_b32 v38, {sT0}
    v_mov_b32 v39, {sT1}
    v_mov_b32 v37, 0
    global_store_dwordx2 v37, v[38:39], {sDbg} sc1
L_noann:""")

def c_gate(c):
    slot = c % 4
    a(f"""    s_add_u32 s76, {sRot}, {c}
    s_and_b32 s76, s76, 7
    s_lshl_b32 s76, s76, 7
    v_add_u32 v37, s76, v{vGW}
    ds_read_b128 v[240:243], v{vGX} offset:{slot*16384}
    ds_read_b128 v[244:247], v{vGX} offset:{slot*16384+4096}
    ds_read_b128 v[248:251], v37""")
    for k in range(3): lg.issue("gate")
def c_gate2():
    lg.wait("gate")
    for k in range(4):
        a(f"    v_dot2_f32_bf16 v{vG0}, v{240+k}, v{248+k}, v{vG0}")
        a(f"    v_dot2_f32_bf16 v{vG1}, v{244+k}, v{248+k}, v{vG1}")

vQ, vW, vE, vCB = 64, 66, 68, 70
def cexp(dst, mul):
    a(f"""    v_mul_f32 v40, {mul}, v22
    v_mul_f32 v41, {mul}, v23
    v_exp_f32 v40, v40
    v_fract_f32 v41, v41
    v_cos_f32 v42, v41
    v_sin_f32 v43, v41
    v_mul_f32 v{dst}, v40, v42
    v_mul_f32 v{dst+1}, v40, v43""")
def c_setup():
    vm.wait("par")
    a(f"""    s_lshl_b32 s76, {sCh}, 4
    s_lshr_b32 s6, s6, s76
    s_lshl_b32 s6, s6, 16
    s_lshr_b32 s7, s7, s76
    s_lshl_b32 s7, s7, 16
    v_mov_b32 v24, 0x3fb8aa3b
    v_mul_f32 v25, s6, v24
    v_exp_f32 v25, v25""")
    for k in range(6): a(f"    v_lshlrev_b32 v{P+k}, 16, v{P+k}")
    a(f"""    v_cvt_pk_bf16_f32 v25, v25, v25
    v_lshlrev_b32 v25, 16, v25             ; dt
    v_mul_f32 v22, v25, v{P}
    v_mul_f32 v23, v25, v{P+1}
    v_mul_f32 v22, v22, v24
    v_mul_f32 v23, 0.15915494, v23""")
    cexp(vW, "0x41000000"); cexp(vQ, "1.0"); cexp(vE, "0x43800000")
    a(f"""    v_mul_f32 v{P+2}, v25, v{P+2}
    v_mul_f32 v{P+3}, v25, v{P+3}
    v_mul_f32 v40, v{P+4}, v{P+2}
    v_mul_f32 v41, v{P+4}, v{P+3}
    v_fma_f32 v{vCB}, -v{P+5}, v{P+3}, v40
    v_fma_f32 v{vCB+1}, v{P+5}, v{P+2}, v41""")
def cmul(d, x, y):
    a(f"""    v_mul_f32 v40, v{x}, v{y}
    v_mul_f32 v41, v{x+1}, v{y}
    v_fma_f32 v{d}, -v{x+1}, v{y+1}, v40
    v_fma_f32 v{d+1}, v{x}, v{y+1}, v41""")
def c_Y(r0, r1):
    for r in range(r0, r1):
        pk = 44 + r % 4
        if r == 0: a(f"    v_mov_b32 v{pk}, 0x3f80")
        elif r == 1: a(f"    v_cvt_pk_bf16_f32 v{pk}, v{vW}, v{vW+1}")
        else:
            src = vW if r == 2 else 72 + 2*((r-1) % 2)
            dst = 72 + 2*(r % 2)
            cmul(dst, src, vW)
            a(f"    v_cvt_pk_bf16_f32 v{pk}, v{dst}, v{dst+1}")
        if r % 4 == 3:
            for k in range(4):
                a(f"    ds_write_b32 v{vSW}, v{44+k} offset:{(r-3+k)*272}"); lg.issue("yw")
            if len(lg.q) > 8: lg.q = lg.q[-4:]; a("    s_waitcnt lgkmcnt(4)")
YF, XF, KD = 96, 128, 160
def c_Yread():
    for s in range(8):
        a(f"    ds_read_b128 {vr(YF+4*s,4)}, v{vSR} offset:{32*s}"); lg.issue("yr")
def c_X():
    X = {0: vCB}
    nx = [76]
    wq = []
    def put(row, reg):
        pk = 44 + len(wq)
        a(f"    v_cvt_pk_bf16_f32 v{pk}, v{reg}, -v{reg+1}")
        wq.append(row)
        if len(wq) == 4: flush()
    first = [True]
    def flush():
        if first[0]:
            lg.wait("yr"); first[0] = False
        for k, row in enumerate(wq):
            a(f"    ds_write_b32 v{vSW}, v{44+k} offset:{row*272}"); lg.issue("xw")
        if len(lg.q) > 8: lg.q = lg.q[-4:]; a("    s_waitcnt lgkmcnt(4)")
        wq.clear()
    put(0, vCB)
    prev = vCB
    for r in range(1, 8):
        d = (76 + 2*(r//2)) if r % 2 == 0 else 72
        cmul(d, prev, vQ); put(r, d); X[r] = d; prev = d
    cmul(84, X[0], vE); put(8, 84)
    cmul(72, X[2], vE); put(9, 72)
    cmul(86, X[4], vE); put(10, 86)
    cmul(72, X[6], vE); put(11, 72)
    cmul(88, 84, vE); put(12, 88)
    cmul(90, 86, vE); put(13, 90)
    cmul(84, 88, vE); put(14, 84)
    cmul(86, 90, vE); put(15, 86)
    cur, oth = 84, 88
    for r in range(16, 21):
        cmul(oth, cur, vE); put(r, oth); cur, oth = oth, cur
    flush()
def c_Kmfma():
    for s in range(8):
        a(f"    ds_read_b128 {vr(XF+4*s,4)}, v{vSR} offset:{32*s}"); lg.issue(f"xr{s}")
    for s in range(8):
        lg.wait(f"xr{s}")
        a(f"    v_mfma_f32_32x32x16_bf16 {vr(KD,16)}, {vr(XF+4*s,4)}, {vr(YF+4*s,4)}, {'0' if s == 0 else vr(KD,16)}")
    vm.wait("idx")
    for k in range(4):
        a(f"    v_and_b32 v{8+2*k}, 0xffff, v{vIdx+k}\n    v_lshrrev_b32 v{9+2*k}, 16, v{vIdx+k}")
    a(f"""    s_mul_i32 s76, {sCh}, 17408
    s_add_u32 s76, s76, {STG+8704}
    v_lshl_add_u32 v37, v0, 4, s76
    s_nop 2
    s_cmp_eq_u32 {sNh}, 0
    s_cbranch_scc1 L_kskip1""")
    for k in range(3): a(f"    ds_write_b128 v37, {vr(KD+4*k,4)} offset:{1024*k}")
    a("L_kskip1:")
def c_Ktable():
    a(f"""    s_cmp_eq_u32 {sNh}, 1
    s_cbranch_scc1 L_kskip2""")
    a(f"""    s_mul_i32 s76, {sCh}, 17408
    s_add_u32 s76, s76, {STG+8704}
    v_lshl_add_u32 v37, v0, 4, s76""")
    for k in range(3): a(f"    ds_read_b128 {vr(XF+4*k,4)}, v37 offset:{1024*k}")
    a(f"""    v_cmp_eq_u32 vcc, 0, v0
    v_mov_b32 v38, s7
    v_and_b32 v39, 31, v0
    v_cndmask_b32 v38, 0, v38, vcc
    v_add_f32 v{KD}, v{KD}, v38
    v_mul_u32_u24 v39, 48, v39
    v_lshrrev_b32 v38, 5, v0
    v_lshl_add_u32 v39, v38, 3, v39
    s_mul_i32 s76, {sCh}, 1536
    s_add_u32 s76, s76, {TBL}
    v_add_u32 v39, s76, v39
    s_waitcnt lgkmcnt(0)""")
    for k in range(12): a(f"    v_add_f32 v{KD+k}, v{KD+k}, v{XF+k}")
    for k in range(6): a(f"    v_cvt_pk_bf16_f32 v{XF+k}, v{KD+2*k}, v{KD+2*k+1}")
    for k in range(3): a(f"    ds_write_b64 v39, {vr(XF+2*k,2)} offset:{16*k}")
    a("L_kskip2:")
def c_Kgather():
    for ch in range(2):
        for e in range(8):
            a(f"    ds_read_u16 v{96+8*ch+e}, v{8+e} offset:{TBL - 65536*(TBL//65536) + 1536*ch}" if False else
              f"    ds_read_u16 v{96+8*ch+e}, v{8+e} offset:{1536*ch}"); lg.issue(f"kg{ch}")
        if ch == 0:
            a(f"""    v_lshlrev_b32 v37, 4, v{vTid}
    v_add_u32 v37, {KA}, v37
    v_add_u32 v38, 4472, v37
    v_add_u32 v39, {4472+8704}, v37""")
            lg.wait("kg0")
            for k in range(4): a(f"    v_lshl_or_b32 v{112+k}, v{97+2*k}, 16, v{96+2*k}")
    a(f"""    v_bfe_u32 v40, v{vTid}, 5, 1
    v_mul_u32_u24 v40, 4476, v40
    v_bfe_u32 v41, v{vTid}, 6, 1
    v_mul_u32_u24 v41, 8704, v41
    v_and_b32 v42, 31, v0
    v_lshl_add_u32 v40, v42, 2, v40
    v_add_u32 v40, v40, v41
    v_add_u32 v40, {KA+4096}, v40
    v_mov_b32 v44, 0
    v_mov_b32 v45, 0
    v_mov_b32 v46, 0
    v_mov_b32 v47, 0""")
    lg.wait("kg1")
    for k in range(4): a(f"    v_lshl_or_b32 v{116+k}, v{105+2*k}, 16, v{104+2*k}")
    a(f"""    ds_write_b128 v37, v[112:115]
    ds_write2_b32 v38, v112, v113 offset0:1 offset1:2
    ds_write2_b32 v38, v114, v115 offset0:3 offset1:4
    ds_write_b128 v37, v[116:119] offset:8704
    ds_write2_b32 v39, v116, v117 offset0:1 offset1:2
    ds_write2_b32 v39, v118, v119 offset0:3 offset1:4
    ds_write_b32 v40, v44
    s_mul_i32 s76, {sCw}, 6784
    s_add_u32 s76, s76, {UA}
    v_lshl_add_u32 v41, v0, 4, s76
    ds_write_b128 v41, v[44:47]
    ds_write_b128 v41, v[44:47] offset:1024
    ds_write_b128 v41, v[44:47] offset:2048""")
UL = 176
def tagchk():
    L = []
    for k in range(4):
        L.append(f"    v_xor_b32 v{40+2*k}, {sT0}, v{UL+4*k+1}")
        L.append(f"    v_xor_b32 v{41+2*k}, {sT1}, v{UL+4*k+3}")
    L += ["    v_or3_b32 v40, v40, v41, v42", "    v_or3_b32 v43, v43, v44, v45", "    v_or3_b32 v40, v40, v46, v47",
          "    v_or_b32 v40, v40, v43", "    v_cmp_ne_u32 vcc, 0, v40"]
    return "\n".join(L)
def tile_loads(sreg):
    return "\n".join(f"    buffer_load_dwordx4 {vr(UL+4*k,4)}, v3, {rWS}, {sreg} offen offset:{1024*k} sc1" for k in range(4))
def checked(name, sreg):
    a(tagchk())
    a(f"    s_cbranch_vccnz L_{name}_slow\nL_{name}_ok:")
    cold.append(f"""L_{name}_slow:
    s_mov_b32 s77, 0
L_{name}_loop:
    s_sleep 4
{tile_loads(sreg)}
    s_add_u32 s77, s77, 1
    s_waitcnt vmcnt(0)
{tagchk()}
    s_cmp_ge_u32 s77, {SPIN}
    s_cbranch_scc1 L_{name}_ok
    s_cbranch_vccnz L_{name}_loop
    s_branch L_{name}_ok""")
def c_uload():
    a(f"""    v_lshlrev_b32 v3, 4, v0
    s_lshl_b32 s79, s2, 14
    s_lshl_b32 s76, {sCw}, 12
    s_add_u32 s79, s79, s76
    s_add_u32 s79, s79, {WS_UT}""")
    a(tile_loads("s79"))
    for k in range(4): vm.issue("ul")
def c_uwrite():
    a(f"""    v_and_b32 v48, 1, v0
    v_mul_u32_u24 v48, {2*6784}, v48
    s_mul_i32 s76, {sCw}, {8*144}
    s_add_u32 s76, s76, {UA + 15*144}
    v_add_u32 v48, s76, v48
    v_lshrrev_b32 v49, 1, v0               ; q = t/4 within 128 (0..31)
    v_lshrrev_b32 v50, 4, v49
    v_lshlrev_b32 v50, 4, v50
    v_lshl_add_u32 v50, v49, 3, v50
    v_add_u32 v50, v48, v50
    v_add_u32 v49, 1, v49
    v_lshrrev_b32 v51, 4, v49
    v_lshlrev_b32 v51, 4, v51
    v_lshl_add_u32 v51, v49, 3, v51
    v_add_u32 v51, v48, v51""")
    vm.all()
    checked("u", "s79")
    for k in range(4):
        a(f"    v_alignbit_b32 v{52+k}, v{UL+4*k+2}, v{UL+4*k}, 16")
    for k in range(4):
        a(f"""    ds_write2_b32 v50, v{UL+4*k}, v{UL+4*k+2} offset0:{72*k} offset1:{72*k+1}
    ds_write_b16 v50, v{UL+4*k} offset:{6784+288*k+2}
    ds_write_b32 v50, v{52+k} offset:{6784+288*k+4}
    ds_write_b16_d16_hi v51, v{UL+4*k+2} offset:{6784+288*k}""")
        if k == 2: a("    s_waitcnt lgkmcnt(8)")
    a(f"""    s_or_b32 s76, s2, {sCw}
    s_cmp_lg_u32 s76, 0
    s_cbranch_scc1 L_noep
    v_mov_b32 v38, {sT0}
    v_mov_b32 v39, {sT1}
    v_mov_b32 v37, 0
    global_store_dwordx2 v37, v[38:39], {sWs} sc1
L_noep:""")
def c_gfinal():
    a(f"""    s_nop 2
    v_add_f32_dpp v{vG0}, v{vG0}, v{vG0} quad_perm:[1,0,3,2] row_mask:0xf bank_mask:0xf
    v_add_f32_dpp v{vG1}, v{vG1}, v{vG1} quad_perm:[1,0,3,2] row_mask:0xf bank_mask:0xf
    s_nop 0
    v_add_f32_dpp v{vG0}, v{vG0}, v{vG0} quad_perm:[2,3,0,1] row_mask:0xf bank_mask:0xf
    v_add_f32_dpp v{vG1}, v{vG1}, v{vG1} quad_perm:[2,3,0,1] row_mask:0xf bank_mask:0xf
    s_nop 0
    v_add_f32_dpp v{vG0}, v{vG0}, v{vG0} row_half_mirror row_mask:0xf bank_mask:0xf
    v_add_f32_dpp v{vG1}, v{vG1}, v{vG1} row_half_mirror row_mask:0xf bank_mask:0xf
    v_mul_f32 v{vG0}, 0xbfb8aa3b, v{vG0}
    v_mul_f32 v{vG1}, 0xbfb8aa3b, v{vG1}
    v_exp_f32 v{vG0}, v{vG0}
    v_exp_f32 v{vG1}, v{vG1}
    v_lshrrev_b32 v37, 3, v{vTid}
    v_add_f32 v{vG0}, 1.0, v{vG0}
    v_add_f32 v{vG1}, 1.0, v{vG1}
    v_rcp_f32 v{vG0}, v{vG0}
    v_rcp_f32 v{vG1}, v{vG1}
    v_lshlrev_b32 v37, 2, v37
    v_add_u32 v37, {GV}, v37
    ds_write2_b32 v37, v{vG0}, v{vG1} offset0:0 offset1:32""")
def cbar():
    lg.all(); a("    s_barrier")

vm.wait("gw")
c_publish_ut()
stamp(2)
cbar()
c_gate(0); c_setup(); c_gate2(); c_Y(0, 8)
cbar()
c_gate(1); c_gate2(); c_Y(8, 32); c_Yread()
cbar()
c_gate(2); c_gate2(); c_X()
cbar()
c_gate(3); c_gate2(); c_Kmfma()
cbar()
c_gate(4); c_gate2(); c_Ktable()
a(f"    v_mov_b32 v37, {TBL}")
for e in range(8): a(f"    v_add_u32 v{8+e}, v37, v{8+e}")
cbar()
c_gate(5); c_gate2(); c_Kgather(); c_uload()
cbar()
stamp(3)
c_gate(6); c_gate2(); c_uwrite()
cbar()
stamp(4)
c_gate(7)
vUA, vKA = 48, 49
a(f"""    v_and_b32 v50, 31, v0
    v_lshrrev_b32 v51, 5, v0
    v_lshrrev_b32 v52, 1, v50
    v_mul_u32_u24 v52, 144, v52
    v_lshl_add_u32 v52, v51, 4, v52
    v_and_b32 v53, 1, v0
    v_xor_b32 v53, 1, v53
    v_mul_u32_u24 v54, 6784, v53
    v_add_u32 v52, v52, v54
    s_mul_i32 s76, {sCh}, {2*6784}
    s_mul_i32 s77, {sNh}, {8*144}
    s_sub_u32 s76, s76, s77
    s_add_u32 s76, s76, {UA + 15*144}
    v_add_u32 v{vUA}, s76, v52
    v_mul_u32_u24 v54, 4476, v53
    v_lshl_add_u32 v54, v51, 4, v54
    v_lshlrev_b32 v50, 2, v50
    v_sub_u32 v54, v54, v50
    s_mul_i32 s76, {sCh}, 8704
    s_lshl_b32 s77, {sNh}, 10
    s_sub_u32 s76, s76, s77
    s_add_u32 s76, s76, {KA + 4188 - 2048 - 96}
    v_add_u32 v{vKA}, s76, v54""")
c_gate2(); c_gfinal()
CF, CACC = 64, 96
for r in range(32): a(f"    v_mov_b32 v{CACC+r}, 0")
cbar()
def conv_reads(k, buf):
    b = CF + 16*buf; o = 96 - 32*k
    return [f"    ds_read_b128 {vr(b+4,4)}, v{vUA} offset:{o+2304}",
            f"    ds_read_b64 {vr(b+8,2)}, v{vKA} offset:{o+2048}",
            f"    ds_read_b64 {vr(b+10,2)}, v{vKA} offset:{o+2056}",
            f"    ds_read_b128 {vr(b,4)}, v{vUA} offset:{o}",
            f"    ds_read_b64 {vr(b+12,2)}, v{vKA} offset:{o}",
            f"    ds_read_b64 {vr(b+14,2)}, v{vKA} offset:{o+8}"]
for l in conv_reads(0, 0): a(l)
a("    s_mov_b32 s76, 8\n.p2align 3\nL_conv:")
for k in range(4):
    buf = k % 2; b = CF + 16*buf
    if k == 3:
        a(f"    v_subrev_u32 v{vUA}, 144, v{vUA}\n    v_subrev_u32 v{vKA}, 128, v{vKA}")
    nx = conv_reads((k+1) % 4, buf ^ 1)
    a("    s_waitcnt lgkmcnt(3)")
    a(f"    v_mfma_f32_32x32x16_bf16 {vr(CACC+16,16)}, {vr(b+4,4)}, {vr(b+8,4)}, {vr(CACC+16,16)}")
    for l in nx[:3]: a(l)
    a("    s_waitcnt lgkmcnt(5)")
    a(f"    v_mfma_f32_32x32x16_bf16 {vr(CACC,16)}, {vr(b,4)}, {vr(b+8,4)}, {vr(CACC,16)}")
    for l in nx[3:]: a(l)
    a("    s_waitcnt lgkmcnt(6)")
    a(f"    v_mfma_f32_32x32x16_bf16 {vr(CACC+16,16)}, {vr(b,4)}, {vr(b+12,4)}, {vr(CACC+16,16)}")
a(f"""    s_sub_u32 s76, s76, 1
    s_cmp_lg_u32 s76, 0
    s_cbranch_scc1 L_conv""")
stamp(5)
def lds_poll(name, addr_v, n, cond):
    ld = {1: f"ds_read_b32 v56, v{addr_v}", 4: f"ds_read_b128 v[56:59], v{addr_v}"}[n]
    red = "" if n == 1 else "    v_and_b32 v56, v56, v57\n    v_and_b32 v58, v58, v59\n    v_and_b32 v56, v56, v58\n"
    a(f"""    s_mov_b32 s77, 0
L_{name}:
    {ld}
    s_add_u32 s77, s77, 1
    s_waitcnt lgkmcnt(0)
{red}    v_cmp_eq_u32 vcc, 0, v56
    s_cmp_ge_u32 s77, {SPIN*50}
    s_cbranch_scc1 L_{name}_x
    s_cbranch_vccnz L_{name}
L_{name}_x:""")
a(f"""    s_lshl_b32 s76, {sCw}, 2
    s_add_u32 s76, s76, {FLG}
    v_mov_b32 v50, s76
    v_mov_b32 v51, 1
    s_waitcnt lgkmcnt(0)
    ds_write_b32 v50, v51
    v_xor_b32 v52, 4, v50
    v_add_u32 v55, 16, v52
    s_mul_i32 s76, {sCw}, 6784
    s_add_u32 s76, s76, {UA}
    v_lshl_add_u32 v53, v0, 4, s76
    s_xor_b32 s76, {sCw}, 1
    s_mul_i32 s76, s76, 6784
    s_add_u32 s76, s76, {UA}
    v_lshl_add_u32 v54, v0, 4, s76""")
lds_poll("p1", 52, 1, None)
a(f"    s_cmp_eq_u32 {sNh}, 0\n    s_cbranch_scc1 L_cx0")
for q in range(4): a(f"    ds_write_b128 v53, {vr(CACC+4*q,4)} offset:{1024*q}")
for r in range(16): a(f"    v_mov_b32 v{CACC+r}, v{CACC+16+r}")
a("    s_branch L_cx1\nL_cx0:")
for q in range(4): a(f"    ds_write_b128 v53, {vr(CACC+16+4*q,4)} offset:{1024*q}")
a("L_cx1:\n    ds_write_b32 v50, v51 offset:16")
a(f"""    v_lshrrev_b32 v60, 4, v0
    v_lshlrev_b32 v60, 17, v60
    v_and_b32 v61, 15, v0
    v_lshl_add_u32 v60, v61, 4, v60
    s_lshl_b32 s78, {sNh}, 21
    s_lshr_b32 s76, s2, 5
    s_lshl_b32 s76, s76, 14
    s_add_u32 s78, s78, s76
    s_and_b32 s76, {sD}, 63
    s_lshl_b32 s76, s76, 8
    s_add_u32 s78, s78, s76
    s_add_u32 s78, s78, {WS_A}""")
for q in range(4):
    a(f"    v_mov_b32 v{144+4*q+1}, {sT0}\n    v_mov_b32 v{144+4*q+3}, {sT1}")
lds_poll("p2", 55, 1, None)
for q in range(4): a(f"    ds_read_b128 {vr(CF+4*q,4)}, v54 offset:{1024*q}")
for q in range(4):
    a(f"    s_waitcnt lgkmcnt({3-q})")
    for k in range(4): a(f"    v_add_f32 v{CACC+4*q+k}, v{CACC+4*q+k}, v{CF+4*q+k}")
    a(f"    v_cvt_pk_bf16_f32 v{144+4*q}, v{CACC+4*q}, v{CACC+4*q+1}")
    a(f"    v_cvt_pk_bf16_f32 v{144+4*q+2}, v{CACC+4*q+2}, v{CACC+4*q+3}")
    a(f"    s_nop 1\n    v_permlane16_swap_b32 v{144+4*q}, v{144+4*q+2}")
    a(f"    buffer_store_dwordx4 {vr(144+4*q,4)}, v60, {rWS}, s78 offen sc1")
    a(f"    s_add_u32 s78, s78, {4*8*16384}")
stamp(6)
a(f"""    s_lshl_b32 s79, {sMt}, 3
    s_add_u32 s79, s79, {sDt}
    s_lshl_b32 s79, s79, 14
    s_lshl_b32 s76, {sCw}, 12
    s_add_u32 s79, s79, s76
    s_add_u32 s79, s79, {WS_A}
    v_and_b32 v62, 7, v0
    v_lshlrev_b32 v62, 4, v62
    s_lshl_b32 s76, {sDt}, 7
    v_add_u32 v62, s76, v62
    global_load_dwordx4 {vr(PARK,4)}, v62, {sB2}
    v_mov_b32 v52, {FLG}
    s_waitcnt vmcnt(0)""")
a(tile_loads("s79"))
a(f"""    s_lshl_b32 s76, {sCw}, 1
    v_and_b32 v62, 7, v0
    v_xor_b32 v62, s76, v62
    v_lshlrev_b32 v62, 4, v62
    v_lshl_add_u32 v62, v61, 8, v62
    v_lshrrev_b32 v63, 4, v0
    v_lshl_add_u32 v62, v63, 1, v62
    v_add_u32 v62, {IMG}, v62
    v_xor_b32 v63, 16, v62""")
lds_poll("p3", 52, 4, None)
a("    s_waitcnt vmcnt(0)")
checked("a", "s79")
for k in range(4):
    ad = 62 + (k >> 1); o = 8*(k & 1)
    a(f"""    ds_write_b16 v{ad}, v{UL+4*k} offset:{o}
    ds_write_b16_d16_hi v{ad}, v{UL+4*k} offset:{o+128}
    ds_write_b16 v{ad}, v{UL+4*k+2} offset:{o+4096}
    ds_write_b16_d16_hi v{ad}, v{UL+4*k+2} offset:{o+4096+128}""")
    if k == 2: a("    s_waitcnt lgkmcnt(8)")
a("    s_waitcnt lgkmcnt(0)")

a("; ================= final\nL_final:")
stamp(7)
a(f"""    v_lshrrev_b32 v1, 3, v0
    s_lshl_b32 s76, {sWave}, 3
    v_add_u32 v2, s76, v1                  ; m
    v_and_b32 v3, 7, v0                    ; c
    v_xor_b32 v4, v3, v1
    v_lshlrev_b32 v4, 4, v4
    v_and_b32 v5, 31, v2
    v_lshl_add_u32 v4, v5, 7, v4
    v_lshrrev_b32 v5, 5, v2
    v_lshl_add_u32 v4, v5, 14, v4
    v_bfe_u32 v5, v2, 1, 3
    v_xor_b32 v5, v3, v5
    v_lshlrev_b32 v5, 4, v5
    v_lshl_add_u32 v5, v2, 7, v5
    v_add_u32 v5, {IMG}, v5
    v_lshlrev_b32 v6, 2, v2
    v_add_u32 v6, {GV}, v6
    v_lshlrev_b32 v7, 4, v3
    v_lshl_add_u32 v7, v2, 10, v7
    s_lshl_b32 s76, {sMt}, 16
    s_lshl_b32 s77, {sDt}, 7
    s_add_u32 s76, s76, s77
    v_add_u32 v7, s76, v7""")
B = 16
for k in range(4):
    a(f"    v_lshlrev_b32 v{B+2*k}, 16, v{PARK+k}\n    v_and_b32 v{B+2*k+1}, 0xffff0000, v{PARK+k}")
a("    s_barrier")
for p in range(4): a(f"    ds_read_b128 {vr(32+4*p,4)}, v4 offset:{32768+4096*p}")
a(f"    ds_read_b128 v[48:51], v5\n    ds_read_b32 v52, v6")
for p in range(4):
    a(f"    s_waitcnt lgkmcnt({5-p})")
    for k in range(4):
        a(f"""    v_lshlrev_b32 v8, 16, v{32+4*p+k}
    v_and_b32 v9, 0xffff0000, v{32+4*p+k}
    v_add_f32 v{B+2*k}, v{B+2*k}, v8
    v_add_f32 v{B+2*k+1}, v{B+2*k+1}, v9""")
a("    s_waitcnt lgkmcnt(0)")
for k in range(4):
    a(f"""    v_lshlrev_b32 v8, 16, v{48+k}
    v_and_b32 v9, 0xffff0000, v{48+k}
    v_sub_f32 v8, v8, v{B+2*k}
    v_sub_f32 v9, v9, v{B+2*k+1}
    v_fmac_f32 v{B+2*k}, v52, v8
    v_fmac_f32 v{B+2*k+1}, v52, v9
    v_cvt_pk_bf16_f32 v{12+k}, v{B+2*k}, v{B+2*k+1}""")
a(f"    global_store_dwordx4 v7, v[12:15], {sOut}")
if DIAG:
    a(f"""    s_waitcnt vmcnt(0)
    s_memrealtime s[76:77]
    s_memtime s[26:27]
    s_lshl_b32 s6, s2, 3
    s_add_u32 s6, s6, {sWave}
    s_lshl_b32 s6, s6, 7
    s_add_u32 s6, s6, {WS_STAMP}
    s_waitcnt lgkmcnt(0)""")
    for i in range(16): a(f"    v_mov_b32 v{16+i}, s{80+i}")
    a("    v_mov_b32 v32, s26\n    v_mov_b32 v33, s27\n    v_mov_b32 v34, s76\n    v_mov_b32 v35, s77\n    v_mov_b32 v36, s100\n    v_mov_b32 v37, s101\n    v_mov_b32 v38, 0\n    v_mov_b32 v39, 0\n    v_mov_b32 v3, 0\n    s_mov_b64 exec, 1")
    for i in range(6): a(f"    buffer_store_dwordx4 {vr(16+4*i,4)}, v3, {rWS}, s6 offen offset:{16*i}")
a("L_end:\n    s_endpgm")
for c in cold: a(c)
a("    s_endpgm")
def rnd_bf16(j):
    u = struct.unpack("<I", struct.pack("<f", float(j)))[0]
    u = (u + 0x7fff + ((u >> 16) & 1)) & 0xffff0000
    return int(struct.unpack("<f", struct.pack("<I", u))[0])
def tpos(l):
    b = (l >> 3) & 31
    if l < 256: row = l & 7
    elif l < 512: row = 8 + ((l & 7) >> 1)
    elif l < 1024: row = 12 + 2*((l >> 8) & 1) + ((l >> 2) & 1)
    else: row = 16 + (l >> 8) - 4
    return b*48 + row*2
a(".p2align 4\n.type L_idx,@object\nL_idx:")
vals = [tpos(rnd_bf16(2047 - i)) for i in range(2048)]
for i in range(0, 2048, 16): a("    .short " + ", ".join(str(v) for v in vals[i:i+16]))
a(".size L_idx, 4096\nL_text_end:")
a(RODATA)
a(kdesc(vgpr=256, sgpr=102, accum=256))
txt = a.text()
open(OPT["out"], "w").write(txt)
errs = hz.check(txt)
for e in errs: print("HAZARD", e)
print("generated", OPT["out"], len(txt.splitlines()), "lines;", len(errs), "hazards")
```
